```python
import torch

def _softmax(x, axis=-1):
    return torch.softmax(x, dim=axis)
def _gelu(x):
    return torch.nn.functional.gelu(x, approximate="tanh")
def _silu(x):
    return torch.nn.functional.silu(x)
def _sigmoid(x):
    return torch.sigmoid(x)
def _layernorm(x, axis=-1, eps=1e-5):
    m = x.mean(dim=axis, keepdim=True)
    v = x.var(dim=axis, keepdim=True, unbiased=False)
    return (x - m) / torch.sqrt(v + eps)
def _scatter_add(tgt, idx, src, axis=0):
    return tgt.clone().index_add_(axis, idx, src)
def _segment_sum(src, seg, n):
    out = torch.zeros((n,) + src.shape[1:], dtype=src.dtype)
    return out.index_add_(0, seg, src)
def _pad(x, pw):
    flat = tuple(v for pair in reversed(pw) for v in pair)
    return torch.nn.functional.pad(x, flat)

kernel_name = 'standalone__weight_only_int_quip__prompt'

def setup_inputs():

    _w = (lambda a: (lambda t: t.to(torch.bfloat16) if t.is_floating_point() else t)(torch.as_tensor(a)))
    B, S, D, F = 1, 2048, 640, 1728
    G = 64 if 64 > 0 else D
    D = (D // G) * G
    ng = D // G
    bits = 8 if 8 > 0 else 4
    qmax = 1 << bits
    qw = torch.randint(0, qmax, (D, F)).to(torch.int32)
    U, _ = (lambda *_a, **_k: torch.linalg.qr(*[torch.as_tensor(_x).float() for _x in _a], **_k))((lambda *s: torch.randn(*s, dtype=torch.bfloat16) * 0.05)(D, D))
    V, _ = (lambda *_a, **_k: torch.linalg.qr(*[torch.as_tensor(_x).float() for _x in _a], **_k))((lambda *s: torch.randn(*s, dtype=torch.bfloat16) * 0.05)(F, F))
    return {
        "x": _w((lambda *s: torch.randn(*s, dtype=torch.bfloat16) * 0.05)(B, S, D)),
        "qw": _w(qw),
        "scales": _w(torch.abs((lambda *s: torch.randn(*s, dtype=torch.bfloat16) * 0.05)(ng, F)) * 0.02 + 0.005),
        "zeros": _w(torch.full((ng, F), qmax / 2.0, dtype=float)),
        "U": _w(U.to(float)),
        "V": _w(V.to(float)),
    }

def reference(x, qw, scales, zeros, U, V):
    B, S, D = x.shape
    ng, F = scales.shape
    G = D // ng
    s = (lambda x, n, axis: torch.repeat_interleave(x, n, dim=axis))(scales, G, axis=0)
    z = (lambda x, n, axis: torch.repeat_interleave(x, n, dim=axis))(zeros, G, axis=0)
    wq = ((lambda x, dt: x.to(dt))(qw, x.dtype) - z) * s
    xr = torch.einsum("bsd,de->bse", x, U)
    h  = torch.einsum("bse,ef->bsf", xr, wq)
    y  = torch.einsum("bsf,fg->bsg", h, V)
    return y
```

```python
import struct
HDR = """.amdgcn_target "amdgcn-amd-amdhsa--gfx950"
.text
"""
def f2u(x): return struct.unpack("<I", struct.pack("<f", x))[0]

class Kern:
    def __init__(self, name):
        self.name = name; self.L = []; self.nv = 0; self.ns = 0; self.lab = 0
        self.acc_off = None
    def __call__(self, s):
        for line in s.strip("\n").split("\n"):
            self.L.append("    " + line.strip() if not line.strip().endswith(":") else line.strip())
    def label(self, p="L"):
        self.lab += 1
        return f"{self.name}_{p}{self.lab}"
    def text(self):
        return (f".globl {self.name}\n.p2align 8\n.type {self.name},@function\n{self.name}:\n" + "\n".join(self.L) + "\n")
    def desc(self, vgpr, sgpr=96, accum=None):
        if accum is None: accum = (vgpr + 3) // 4 * 4
        return f""".amdhsa_kernel {self.name}
  .amdhsa_next_free_vgpr {vgpr}
  .amdhsa_next_free_sgpr {sgpr}
  .amdhsa_accum_offset {accum}
  .amdhsa_group_segment_fixed_size 0
  .amdhsa_kernarg_size 72
  .amdhsa_user_sgpr_count 2
  .amdhsa_user_sgpr_kernarg_segment_ptr 1
  .amdhsa_system_sgpr_workgroup_id_x 1
.end_amdhsa_kernel
"""
def build(path, launches, kerns, head=""):
    s = head
    for n, g, b, l in launches:
        s += f"; @launch kernel={n} grid=({g},1,1) block=({b},1,1) lds={l}\n"
    s += HDR
    for k, *_ in kerns: s += k.text()
    s += '.section .rodata,"a"\n'
    for k, v, sg, ac in kerns:
        s += ".p2align 6\n" + k.desc(v, sg, ac)
    open(path, "w").write(s)
```

```python
from asmlib import *
import sys
S, D, F = 2048, 640, 1728
WQF_OFF, TF_OFF, XF_OFF = 0, 4<<20, 8<<20
WQF_SZ, TF_SZ, XF_SZ = 8*54*5*1024, 54*40*1024, 64*40*1024
STAMP_OFF = 200*1024*1024
STAMPS = "--stamps" in sys.argv

class VM:
    def __init__(self, k): self.k = k; self.q = []
    def issue(self, tag): self.q.append(tag); assert len(self.q) <= 63, "vmcnt overflow"
    def wait(self, tag):
        idx = max(i for i, t in enumerate(self.q) if t == tag) if tag in self.q else -1
        if idx < 0: return
        n = len(self.q) - 1 - idx
        self.k(f"s_waitcnt vmcnt({n})")
        self.q = self.q[idx+1:]
    def waitall(self):
        self.k("s_waitcnt vmcnt(0)"); self.q = []

def srd(k, sb, lo, hi, size, off=0):
    if off:
        k(f"s_add_u32 s{sb}, s{lo}, {off}\ns_addc_u32 s{sb+1}, s{hi}, 0")
    else:
        k(f"s_mov_b32 s{sb}, s{lo}\ns_mov_b32 s{sb+1}, s{hi}")
    k(f"s_mov_b32 s{sb+2}, {size}\ns_mov_b32 s{sb+3}, 0x20000")

def prologue(k, nwg):
    k(f"""
    s_cmp_ge_u32 s2, {nwg}
    s_cbranch_scc1 {k.name}_done
    s_load_dwordx16 s[44:59], s[0:1], 0
    s_load_dwordx2 s[60:61], s[0:1], 64
    """)
    if STAMPS: k("s_memrealtime s[64:65]")
    k(f"""
    v_lshrrev_b32 v1, 6, v0
    v_and_b32 v2, 63, v0
    v_readfirstlane_b32 s3, v1
    s_and_b32 s4, s2, 7
    s_lshr_b32 s5, s2, 3
    """)
def stamp(k, i):
    if STAMPS: k(f"s_memrealtime s[{64+2*i}:{65+2*i}]")
def epilogue(k, which):
    if STAMPS:
        k(f"""
        s_memrealtime s[70:71]
        s_waitcnt lgkmcnt(0)
        s_cmp_lg_u32 s3, 0
        s_cbranch_scc1 {k.name}_done
        """)
        srd(k, 8, 60, 61, 268435456)
        k(f"""
        s_lshl_b32 s5, s2, 5
        s_add_u32 s5, s5, {STAMP_OFF + which*256*32}
        v_mov_b32 v4, s64
        v_mov_b32 v5, s65
        v_mov_b32 v6, s66
        v_mov_b32 v7, s67
        v_mov_b32 v8, s68
        v_mov_b32 v9, s69
        v_mov_b32 v10, s70
        v_mov_b32 v11, s71
        v_mov_b32 v3, 0
        v_cmp_eq_u32 vcc, 0, v0
        s_and_saveexec_b64 s[30:31], vcc
        buffer_store_dwordx4 v[4:7], v3, s[8:11], s5 offen
        buffer_store_dwordx4 v[8:11], v3, s[8:11], s5 offen offset:16
        """)
    k(f"{k.name}_done:\ns_endpgm")

def t_coords(k):
    k("""
    s_mul_i32 s6, s4, 27
    s_add_u32 s6, s6, s5
    s_and_b32 s7, s6, 7
    s_lshr_b32 s6, s6, 3
    """)

def gen_dequant(k, vm, sc=""):
    srd(k, 8, 46, 47, D*F*4); srd(k, 12, 48, 49, 10*F*2); srd(k, 16, 50, 51, 10*F*2); srd(k, 20, 60, 61, WQF_SZ, WQF_OFF)
    k("""
    v_and_b32 v3, 15, v2
    v_lshrrev_b32 v4, 4, v2
    v_lshlrev_b32 v5, 4, v2
    """)
    skip = k.label("dq_skip")
    base = 16
    for r in range(3):
        if r == 2:
            k(f"s_cmp_ge_u32 s3, 2\ns_cbranch_scc1 {skip}")
        b = base + r*20
        k(f"""
        s_add_u32 s24, s3, {4*r}
        s_cmp_ge_u32 s24, 5
        s_cselect_b32 s25, 1, 0
        s_mul_i32 s26, s25, 5
        s_sub_u32 s24, s24, s26
        s_lshl_b32 s26, s6, 1
        s_add_u32 s25, s25, s26
        s_mul_i32 s26, s7, 80
        s_lshl_b32 s27, s24, 4
        s_add_u32 s26, s26, s27
        v_add_u32 v6, s26, v3
        s_lshl_b32 s27, s25, 5
        v_lshl_add_u32 v7, v4, 3, s27
        v_mul_u32_u24 v8, {F}, v6
        v_add_lshl_u32 v8, v8, v7, 2
        v_lshrrev_b32 v9, 6, v6
        v_mul_u32_u24 v9, {F}, v9
        v_add_lshl_u32 v9, v9, v7, 1
        buffer_load_dwordx4 v[{b}:{b+3}], v8, s[8:11], 0 offen
        buffer_load_dwordx4 v[{b+4}:{b+7}], v8, s[8:11], 0 offen offset:16
        buffer_load_dwordx4 v[{b+8}:{b+11}], v9, s[12:15], 0 offen
        buffer_load_dwordx4 v[{b+12}:{b+15}], v9, s[16:19], 0 offen
        s_mul_i32 s26, s7, 54
        s_add_u32 s26, s26, s25
        s_mul_i32 s26, s26, 5
        s_add_u32 s26, s26, s24
        s_lshl_b32 s{28+r}, s26, 10
        """)
    def proc(r):
        b = base + r*20
        t = 80
        for j in range(8): k(f"v_cvt_f32_i32 v{b+j}, v{b+j}")
        for j in range(4): k(f"v_cvt_pk_bf16_f32 v{t+j}, v{b+2*j}, v{b+2*j+1}")
        for j in range(4):
            k(f"v_lshlrev_b32 v{b+2*j}, 16, v{t+j}\nv_and_b32 v{b+2*j+1}, 0xffff0000, v{t+j}")
        for j in range(4):
            k(f"v_lshlrev_b32 v{t+8+2*j}, 16, v{b+12+j}\nv_and_b32 v{t+8+2*j+1}, 0xffff0000, v{b+12+j}")
        for j in range(8): k(f"v_sub_f32 v{b+j}, v{b+j}, v{t+8+j}")
        for j in range(4): k(f"v_cvt_pk_bf16_f32 v{t+j}, v{b+2*j}, v{b+2*j+1}")
        for j in range(4):
            k(f"v_lshlrev_b32 v{b+2*j}, 16, v{t+j}\nv_and_b32 v{b+2*j+1}, 0xffff0000, v{t+j}")
        for j in range(4):
            k(f"v_lshlrev_b32 v{t+8+2*j}, 16, v{b+8+j}\nv_and_b32 v{t+8+2*j+1}, 0xffff0000, v{b+8+j}")
        for j in range(8): k(f"v_mul_f32 v{b+j}, v{b+j}, v{t+8+j}")
        for j in range(4): k(f"v_cvt_pk_bf16_f32 v{b+16+j}, v{b+2*j}, v{b+2*j+1}")
        k(f"buffer_store_dwordx4 v[{b+16}:{b+19}], v5, s[20:23], s{28+r} offen {sc}")
    k("s_waitcnt vmcnt(0)")
    proc(2)
    k(f"{skip}:")
    k("s_waitcnt vmcnt(1)" if False else "s_waitcnt vmcnt(0)")
    proc(0); proc(1)

def gen_x(k, sc=""):
    vm = VM(k)
    srd(k, 8, 44, 45, S*D*2); srd(k, 12, 52, 53, D*D*2); srd(k, 16, 60, 61, XF_SZ, XF_OFF)
    NST = 3; XB = 32768; UB = 16384; STB = XB + UB
    k(f"""
    s_sub_u32 s5, s5, 27
    v_lshrrev_b32 v3, 3, v2
    v_and_b32 v4, 7, v2
    s_lshl_b32 s24, s4, 8
    s_lshl_b32 s25, s3, 6
    s_add_u32 s24, s24, s25
    s_mul_i32 s24, s24, 1280
    """)
    for t in range(8):
        k(f"""
        v_add_u32 v5, {t*8}, v3
        v_bfe_u32 v6, v5, 1, 3
        v_xor_b32 v6, v6, v4
        v_lshlrev_b32 v6, 4, v6
        v_mul_u32_u24 v5, 1280, v5
        v_add_u32 v{16+t}, v5, v6
        """)
        if t & 3: k(f"v_subrev_u32 v{16+t}, {1024*(t&3)}, v{16+t}")
    k(f"""
    v_lshrrev_b32 v3, 4, v2
    v_and_b32 v4, 15, v2
    v_lshlrev_b32 v5, 2, v3
    v_xor_b32 v5, v5, v4
    v_lshlrev_b32 v5, 4, v5
    v_mul_u32_u24 v6, 1280, v3
    v_add_u32 v24, v5, v6
    """)
    for t in range(1, 4): k(f"v_add_u32 v{24+t}, {t*4*1280 - 1024*t}, v24")
    k(f"""
    s_mul_i32 s25, s3, {16*1280}
    s_lshl_b32 s26, s5, 8
    s_add_u32 s25, s25, s26
    s_lshl_b32 s26, s3, 13
    s_lshl_b32 s27, s3, 12
    s_add_u32 s27, s27, {XB}
    """)
    k(f"""
    v_and_b32 v3, 31, v2
    v_lshrrev_b32 v4, 5, v2
    v_bfe_u32 v5, v3, 1, 3
    v_lshlrev_b32 v6, 7, v3
    v_add_u32 v6, s26, v6
    """)
    for ks in range(4):
        k(f"v_or_b32 v7, {2*ks}, v4\nv_xor_b32 v7, v7, v5\nv_lshl_add_u32 v{28+ks}, v7, 4, v6")
    k(f"""
    v_bfe_u32 v3, v2, 2, 2
    v_lshlrev_b32 v5, 11, v4
    v_lshl_add_u32 v5, v3, 8, v5
    v_bfe_u32 v6, v2, 4, 1
    v_lshl_add_u32 v5, v6, 5, v5
    v_and_b32 v6, 3, v2
    v_lshl_add_u32 v5, v6, 3, v5
    v_add_u32 v5, {XB}, v5
    """)
    for et in range(4):
        k(f"v_xor_b32 v7, {et}, v3\nv_lshl_add_u32 v{32+et}, v7, 6, v5")
    def issue(c):
        st = (c % NST) * STB
        for half in range(2):
            k(f"s_add_u32 m0, s26, {st + half*4096}\ns_nop 0")
            for t in range(4):
                k(f"buffer_load_dwordx4 v{16+half*4+t}, s[8:11], s24 offen offset:{1024*t} lds"); vm.issue(c)
        k(f"s_add_u32 m0, s27, {st}\ns_nop 0")
        for t in range(4):
            k(f"buffer_load_dwordx4 v{24+t}, s[12:15], s25 offen offset:{1024*t} lds"); vm.issue(c)
        k(f"s_add_u32 s24, s24, 128\ns_add_u32 s25, s25, {64*1280}")
    issue(0); issue(1)
    def reads(c, ks, buf):
        st = (c % NST) * STB
        b = 40 + buf*24
        for et in range(4):
            for rd in range(2):
                k(f"ds_read_b64_tr_b16 v[{b+et*4+rd*2}:{b+et*4+rd*2+1}], v{32+et} offset:{st + ks*4096 + rd*1024}")
        for sb in range(2):
            k(f"ds_read_b128 v[{b+16+sb*4}:{b+19+sb*4}], v{28+ks} offset:{st + sb*4096}")
    assert 2*STB + 4*4096 < 65536*2
    return vm, issue, reads, NST, STB

def x_main(k, sc=""):
    vm, issue, reads, NST, STB = gen_x(k, sc)
    def reads2(ks, buf):
        b = 40 + buf*24
        for et in range(4):
            for rd in range(2):
                k(f"ds_read_b64_tr_b16 v[{b+et*4+rd*2}:{b+et*4+rd*2+1}], v{32+et} offset:{ks*4096 + rd*1024}")
        for sb in range(2):
            k(f"ds_read_b128 v[{b+16+sb*4}:{b+19+sb*4}], v{28+ks} offset:{sb*4096}")
    first = True
    for c in range(10):
        vm.wait(c)
        k("s_barrier")
        if c + 2 < 10: issue(c + 2)
        reads2(0, 0)
        for ks in range(4):
            buf = ks & 1
            if ks < 3:
                reads2(ks + 1, buf ^ 1)
                k("s_waitcnt lgkmcnt(10)")
            else:
                k("s_waitcnt lgkmcnt(0)")
            b = 40 + buf*24
            for et in range(4):
                for sb in range(2):
                    a = (et*2 + sb)*16
                    src = "0" if first else f"a[{a}:{a+15}]"
                    k(f"v_mfma_f32_32x32x16_bf16 a[{a}:{a+15}], v[{b+et*4}:{b+et*4+3}], v[{b+16+sb*4}:{b+19+sb*4}], {src}")
            first = False
        d = STB if (c % NST) != NST-1 else -(NST-1)*STB
        for r in range(28, 36):
            k(f"v_add_u32 v{r}, {d & 0xffffffff}, v{r}")
    k(f"""
    s_nop 7
    s_nop 7
    v_lshlrev_b32 v3, 4, v2
    s_lshl_b32 s24, s4, 3
    s_lshl_b32 s25, s3, 1
    s_add_u32 s24, s24, s25
    s_mul_i32 s24, s24, 40
    s_lshl_b32 s25, s5, 3
    s_add_u32 s24, s24, s25
    s_lshl_b32 s24, s24, 10
    s_add_u32 s25, s24, {40*1024}
    s_add_u32 s28, s24, 4096
    s_add_u32 s29, s25, 4096
    """)
    n = 0
    for et in range(4):
        for sb in range(2):
            a = (et*2 + sb)*16
            for half in range(2):
                t = 40 + (n % 4)*12; n += 1
                for j in range(8): k(f"v_accvgpr_read_b32 v{t+j}, a{a+half*8+j}")
                for j in range(4): k(f"v_cvt_pk_bf16_f32 v{t+8+j}, v{t+2*j}, v{t+2*j+1}")
                k(f"s_nop 1\nv_permlane32_swap_b32 v{t+8}, v{t+10}\nv_permlane32_swap_b32 v{t+9}, v{t+11}")
                kk = et*2 + half
                so = (24 + sb) if kk < 4 else (28 + sb)
                k(f"buffer_store_dwordx4 v[{t+8}:{t+11}], v3, s[16:19], s{so} offen offset:{(kk&3)*1024} {sc}")

def kernel_A():
    k = Kern("quipA_kernel")
    prologue(k, 256)
    k("s_waitcnt lgkmcnt(0)")
    xl = k.label("x")
    k(f"s_cmp_ge_u32 s5, 27\ns_cbranch_scc1 {xl}")
    t_coords(k)
    gen_dequant(k, None)
    k(f"s_branch {k.name}_fin")
    k(f"{xl}:")
    x_main(k)
    k(f"{k.name}_fin:")
    epilogue(k, 0)
    return k, 128+128, 96, 128

def t_main(k, asc="", osc=""):
    vm = VM(k)
    NSLOT = 10; DA = 4
    srd(k, 8, 54, 55, F*F*2); srd(k, 12, 60, 61, WQF_SZ, WQF_OFF); srd(k, 16, 60, 61, TF_SZ, TF_OFF)
    k(f"""
    v_lshrrev_b32 v3, 3, v2
    v_and_b32 v4, 7, v2
    v_and_b32 v5, 2, v3
    v_xor_b32 v4, v4, v5
    v_mul_u32_u24 v3, 3456, v3
    """)
    for t in range(4):
        k(f"v_xor_b32 v5, {(t&1)*4}, v4\nv_lshl_add_u32 v{16+t}, v5, 4, v3")
        if t: k(f"v_add_u32 v{16+t}, {t*8*3456 - t*1024}, v{16+t}")
    k(f"""
    s_mul_i32 s24, s3, {32*3456}
    s_lshl_b32 s25, s6, 7
    s_add_u32 s24, s24, s25
    s_mul_i32 s26, s3, {NSLOT*4096}
    s_mul_i32 s27, s7, 54
    s_add_u32 s27, s27, s3
    s_mul_i32 s27, s27, 5120
    v_lshlrev_b32 v20, 4, v2
    """)
    def issueV(i):
        k(f"s_add_u32 m0, s26, {(i % NSLOT)*4096}\ns_nop 0")
        for t in range(4):
            k(f"buffer_load_dwordx4 v{16+t}, s[8:11], s24 offen offset:{1024*t} lds"); vm.issue(("V", i))
        k(f"s_add_u32 s24, s24, {128*3456}")
    AB = 64
    def issueA(i, mt):
        r = AB + (i % DA)*20 + mt*4
        off = mt*1024
        if mt == 4:
            k(f"buffer_load_dwordx4 v[{r}:{r+3}], v21, s[12:15], s27 offen {asc}")
            k(f"s_add_u32 s27, s27, {4*5120}")
        else:
            k(f"buffer_load_dwordx4 v[{r}:{r+3}], v20, s[12:15], s27 offen offset:{off} {asc}")
        vm.issue(("A", i))
    k("v_add_u32 v21, 4096, v20")
    k(f"""
    v_lshrrev_b32 v3, 4, v2
    v_bfe_u32 v4, v2, 2, 2
    v_lshl_add_u32 v4, v3, 3, v4
    v_lshlrev_b32 v4, 7, v4
    v_and_b32 v5, 3, v2
    v_lshl_add_u32 v4, v5, 3, v4
    v_add_u32 v4, s26, v4
    v_bfe_u32 v5, v2, 3, 2
    """)
    for nt in range(4):
        k(f"v_xor_b32 v6, {nt}, v5\nv_lshl_add_u32 v{24+nt}, v6, 5, v4")
    NSTEP = 14
    last = k.label("tlast")
    for i in range(min(NSLOT, NSTEP)): issueV(i)
    yield "prefetched"
    for i in range(DA):
        for mt in range(5): issueA(i, mt)
    BB = 32
    def readsB(i):
        b = BB + (i & 1)*16
        for nt in range(4):
            for rd in range(2):
                k(f"ds_read_b64_tr_b16 v[{b+nt*4+rd*2}:{b+nt*4+rd*2+1}], v{24+nt} offset:{(i % NSLOT)*4096 + rd*512}")
    vm.wait(("V", 0)); readsB(0)
    for i in range(NSTEP):
        if i == NSTEP-1:
            k(f"s_cmp_ge_u32 s3, 2\ns_cbranch_scc1 {last}")
        if i + 1 < NSTEP:
            vm.wait(("V", i+1))
            readsB(i+1)
            vm.wait(("A", i))
            k("s_waitcnt lgkmcnt(8)")
        else:
            vm.wait(("A", i))
            k("s_waitcnt lgkmcnt(0)")
        if i + NSLOT < NSTEP: issueV(i + NSLOT)
        b = BB + (i & 1)*16
        for mt in range(5):
            r = AB + (i % DA)*20 + mt*4
            for nt in range(4):
                a = (mt*4 + nt)*4
                src = "0" if i == 0 else f"a[{a}:{a+3}]"
                k(f"v_mfma_f32_16x16x32_bf16 a[{a}:{a+3}], v[{r}:{r+3}], v[{b+nt*4}:{b+nt*4+3}], {src}")
            if i + DA < NSTEP: issueA(i + DA, mt)
    k(f"{last}:")
    k("s_waitcnt vmcnt(0) lgkmcnt(0)")
    k(f"s_nop 7\nv_add_u32 v22, s26, v20")
    for t in range(20):
        k(f"ds_write_b128 v22, a[{t*4}:{t*4+3}] offset:{t*1024}")
    k("s_waitcnt lgkmcnt(0)\ns_barrier")
    done = k.label("tdone")
    for r in range(3):
        if r == 2: k(f"s_cmp_ge_u32 s3, 2\ns_cbranch_scc1 {done}")
        k(f"""
        s_add_u32 s28, s3, {4*r}
        s_cmp_ge_u32 s28, 5
        s_cselect_b32 s29, 1, 0
        s_mul_i32 s30, s29, 5
        s_sub_u32 s28, s28, s30
        s_lshl_b32 s30, s28, 12
        s_lshl_b32 s31, s29, 11
        s_add_u32 s30, s30, s31
        v_add_u32 v23, s30, v20
        v_add_u32 v28, {2*NSLOT*4096}, v23
        s_lshl_b32 s30, s6, 1
        s_add_u32 s30, s30, s29
        s_mul_i32 s30, s30, 40
        s_mul_i32 s31, s7, 5
        s_add_u32 s30, s30, s31
        s_add_u32 s30, s30, s28
        s_lshl_b32 s30, s30, 10
        """)
        b = 64 + r*40
        for ww in range(4):
            av = "v23" if ww < 2 else "v28"
            for p in range(2):
                d = b + ww*8 + p*4
                k(f"ds_read_b128 v[{d}:{d+3}], {av} offset:{(ww&1)*NSLOT*4096 + p*1024}")
        k("s_waitcnt lgkmcnt(0)")
        for j in range(8):
            k(f"v_add_f32 v{b+j}, v{b+j}, v{b+8+j}\nv_add_f32 v{b+16+j}, v{b+16+j}, v{b+24+j}")
        for j in range(8): k(f"v_add_f32 v{b+j}, v{b+j}, v{b+16+j}")
        o = b + 32
        k(f"""
        v_cvt_pk_bf16_f32 v{o}, v{b}, v{b+1}
        v_cvt_pk_bf16_f32 v{o+1}, v{b+2}, v{b+3}
        v_cvt_pk_bf16_f32 v{o+2}, v{b+4}, v{b+5}
        v_cvt_pk_bf16_f32 v{o+3}, v{b+6}, v{b+7}
        s_nop 1
        v_permlane16_swap_b32 v{o}, v{o+2}
        v_permlane16_swap_b32 v{o+1}, v{o+3}
        buffer_store_dwordx4 v[{o}:{o+3}], v20, s[16:19], s30 offen {osc}
        """)
    k(f"{done}:")

def kernel_B():
    k = Kern("quipB_kernel")
    prologue(k, 256)
    k(f"s_cmp_ge_u32 s5, 27\ns_cbranch_scc1 {k.name}_done")
    t_coords(k)
    k("s_waitcnt lgkmcnt(0)")
    for _ in t_main(k): pass
    epilogue(k, 1)
    return k, 192+80, 96, 192

def y_main(k):
    vm = VM(k)
    srd(k, 8, 60, 61, TF_SZ, TF_OFF); srd(k, 12, 60, 61, XF_SZ, XF_OFF); srd(k, 16, 56, 57, S*F*2)
    k(f"""
    v_lshlrev_b32 v20, 4, v2
    s_lshl_b32 s24, s6, 2
    s_add_u32 s24, s24, s3
    s_mul_i32 s24, s24, 40960
    s_lshl_b32 s25, s7, 2
    s_add_u32 s25, s25, s3
    s_mul_i32 s25, s25, 40960
    s_mul_i32 s26, s3, 40960
    """)
    for gb in range(4): k(f"v_add_u32 v{24+gb}, {gb*40960}, v20")
    XB = 64
    def issue(c):
        k(f"s_add_u32 m0, s26, {c*4096}\ns_nop 0")
        for t in range(4):
            k(f"buffer_load_dwordx4 v20, s[8:11], s24 offen offset:{1024*t} lds"); vm.issue(c)
        for t in range(4):
            r = XB + (c*4 + t)*4
            k(f"buffer_load_dwordx4 v[{r}:{r+3}], v20, s[12:15], s25 offen offset:{1024*t}"); vm.issue(c)
        k("s_add_u32 s24, s24, 4096\ns_add_u32 s25, s25, 4096")
    PF = 4
    for c in range(PF): issue(c)
    def readsA(kk):
        b = 32 + (kk & 1)*16
        for gb in range(4):
            k(f"ds_read_b128 v[{b+gb*4}:{b+gb*4+3}], v{24+gb} offset:{kk*1024}")
    for c in range(10):
        vm.wait(c)
        k("s_barrier")
        readsA(c*4)
        if c + PF < 10: issue(c + PF)
        for t in range(4):
            kk = c*4 + t
            if t < 3:
                readsA(kk + 1); k("s_waitcnt lgkmcnt(4)")
            else:
                k("s_waitcnt lgkmcnt(0)")
            b = 32 + (kk & 1)*16
            r = XB + kk*4
            for gb in range(4):
                a = gb*16
                src = "0" if kk == 0 else f"a[{a}:{a+15}]"
                k(f"v_mfma_f32_32x32x16_bf16 a[{a}:{a+15}], v[{b+gb*4}:{b+gb*4+3}], v[{r}:{r+3}], {src}")
    k(f"""
    s_nop 7
    s_nop 7
    v_and_b32 v3, 31, v2
    v_lshrrev_b32 v4, 5, v2
    v_mul_u32_u24 v3, 3456, v3
    v_lshl_add_u32 v3, v4, 4, v3
    s_lshl_b32 s24, s7, 2
    s_add_u32 s24, s24, s3
    s_mul_i32 s24, s24, {32*3456}
    s_lshl_b32 s25, s6, 8
    s_add_u32 s24, s24, s25
    """)
    fin = k.label("yfin")
    n = 0
    for gb in range(4):
        if gb == 2: k(f"s_cmp_eq_u32 s6, 13\ns_cbranch_scc1 {fin}")
        a = gb*16
        for half in range(2):
            t = 64 + (n % 4)*12; n += 1
            for j in range(8): k(f"v_accvgpr_read_b32 v{t+j}, a{a+half*8+j}")
            for j in range(4): k(f"v_cvt_pk_bf16_f32 v{t+8+j}, v{t+2*j}, v{t+2*j+1}")
            k(f"s_nop 1\nv_permlane32_swap_b32 v{t+8}, v{t+10}\nv_permlane32_swap_b32 v{t+9}, v{t+11}")
            k(f"buffer_store_dwordx4 v[{t+8}:{t+11}], v3, s[16:19], s24 offen offset:{gb*64 + half*32}")
    k(f"{fin}:")

def kernel_C():
    k = Kern("quipC_kernel")
    prologue(k, 224)
    k("""
    s_mul_i32 s7, s5, 37
    s_lshr_b32 s7, s7, 8
    s_mul_i32 s6, s7, 7
    s_sub_u32 s6, s5, s6
    s_and_b32 s24, s4, 1
    s_mul_i32 s24, s24, 7
    s_add_u32 s6, s6, s24
    s_lshr_b32 s24, s4, 1
    s_lshl_b32 s24, s24, 2
    s_add_u32 s7, s7, s24
    s_waitcnt lgkmcnt(0)
    """)
    y_main(k)
    epilogue(k, 2)
    return k, 224+64, 96, 224

if __name__ == "__main__":
    assert all((j*37 >> 8) == j//7 for j in range(28))
    A = kernel_A(); B = kernel_B(); C = kernel_C()
    out = sys.argv[1]
    build(out, [(A[0].name, 256, 256, 147456), (B[0].name, 256, 256, 163840), (C[0].name, 224, 256, 163840)], [A, B, C])
```

```python
from asmlib import *
import sys
S, D, F = 2048, 640, 1728
WQF_OFF, TF_OFF, XF_OFF = 0, 4<<20, 8<<20
WQF_SZ, TF_SZ, XF_SZ = 8*54*5*1024, 54*40*1024, 64*40*1024
STAMP_OFF = 200*1024*1024
STAMPS = "--stamps" in sys.argv
NAME = "standalone__weight_only_int_quip__prompt_kernel"
SPIN_MAX = 1 << 20
SC = "sc1"

class VM:
    def __init__(self, k): self.k = k; self.q = []
    def issue(self, tag): self.q.append(tag); assert len(self.q) <= 63, "vmcnt overflow"
    def wait(self, tag):
        if tag not in self.q: return
        idx = max(i for i, t in enumerate(self.q) if t == tag)
        n = len(self.q) - 1 - idx
        self.k(f"s_waitcnt vmcnt({n})")
        self.q = self.q[idx+1:]
    def waitall(self):
        self.k("s_waitcnt vmcnt(0)"); self.q = []

def srd(k, sb, lo, hi, size, off=0):
    if off:
        k(f"s_add_u32 s{sb}, s{lo}, {off}\ns_addc_u32 s{sb+1}, s{hi}, 0")
    else:
        k(f"s_mov_b32 s{sb}, s{lo}\ns_mov_b32 s{sb+1}, s{hi}")
    k(f"s_mov_b32 s{sb+2}, {size}\ns_mov_b32 s{sb+3}, 0x20000")

def stamp(k, i):
    if STAMPS: k(f"s_memrealtime s[{64+2*i}:{65+2*i}]")

def publish(k, vm, val):
    vm.waitall()
    k("s_barrier")
    l = k.label("pub")
    k(f"""
    s_cmp_lg_u32 s3, 0
    s_cbranch_scc1 {l}
    v_mov_b32 v4, {val}
    v_mov_b32 v5, 0
    s_mov_b64 exec, 1
    buffer_store_byte v4, v5, s[32:35], s36 offen {SC}
    s_mov_b64 exec, -1
    {l}:
    """)

def poll(k, voff, vmask, between=None):
    l = k.label("pl"); d = k.label("pd")
    k(f"s_cmp_lg_u32 s3, 0\ns_cbranch_scc1 {d}\ns_mov_b32 s37, 0")
    k(f"""
    {l}:
    buffer_load_ubyte v6, {voff}, s[32:35], 0 offen {SC}
    s_add_u32 s37, s37, 1
    s_waitcnt vmcnt(0)
    v_and_b32 v6, v6, {vmask}
    v_cmp_ne_u32 vcc, v6, {vmask}
    s_cmp_ge_u32 s37, {SPIN_MAX}
    s_cbranch_scc1 {d}
    s_cbranch_vccz {d}
    s_sleep 1
    s_branch {l}
    {d}:
    s_barrier
    """)

def dq_loads(k, vm):
    srd(k, 8, 46, 47, D*F*4); srd(k, 12, 48, 49, 10*F*2); srd(k, 16, 50, 51, 10*F*2)
    k("v_and_b32 v3, 15, v2\nv_lshrrev_b32 v4, 4, v2")
    for r in range(3):
        b = 64 + r*20
        k(f"""
        s_add_u32 s24, s3, {4*r}
        s_min_u32 s24, s24, 9
        s_cmp_ge_u32 s24, 5
        s_cselect_b32 s25, 1, 0
        s_mul_i32 s26, s25, 5
        s_sub_u32 s24, s24, s26
        s_lshl_b32 s26, s6, 1
        s_add_u32 s25, s25, s26
        s_mul_i32 s26, s7, 80
        s_lshl_b32 s27, s24, 4
        s_add_u32 s26, s26, s27
        v_add_u32 v6, s26, v3
        s_lshl_b32 s27, s25, 5
        v_lshl_add_u32 v7, v4, 3, s27
        v_mul_u32_u24 v8, {F}, v6
        v_add_lshl_u32 v8, v8, v7, 2
        v_lshrrev_b32 v9, 6, v6
        v_mul_u32_u24 v9, {F}, v9
        v_add_lshl_u32 v9, v9, v7, 1
        buffer_load_dwordx4 v[{b}:{b+3}], v8, s[8:11], 0 offen
        buffer_load_dwordx4 v[{b+4}:{b+7}], v8, s[8:11], 0 offen offset:16
        buffer_load_dwordx4 v[{b+8}:{b+11}], v9, s[12:15], 0 offen
        buffer_load_dwordx4 v[{b+12}:{b+15}], v9, s[16:19], 0 offen
        s_mul_i32 s26, s7, 54
        s_add_u32 s26, s26, s25
        s_mul_i32 s26, s26, 5
        s_add_u32 s26, s26, s24
        s_lshl_b32 s{40+r}, s26, 10
        """)
        for _ in range(4): vm.issue(("D", r))

def dq_proc(k, vm):
    def proc(r):
        b = 64 + r*20; t = 124
        for j in range(8): k(f"v_cvt_f32_i32 v{b+j}, v{b+j}")
        for j in range(4): k(f"v_cvt_pk_bf16_f32 v{t+j}, v{b+2*j}, v{b+2*j+1}")
        for j in range(4):
            k(f"v_lshlrev_b32 v{b+2*j}, 16, v{t+j}\nv_and_b32 v{b+2*j+1}, 0xffff0000, v{t+j}")
        for j in range(4):
            k(f"v_lshlrev_b32 v{t+8+2*j}, 16, v{b+12+j}\nv_and_b32 v{t+8+2*j+1}, 0xffff0000, v{b+12+j}")
        for j in range(8): k(f"v_sub_f32 v{b+j}, v{b+j}, v{t+8+j}")
        for j in range(4): k(f"v_cvt_pk_bf16_f32 v{t+j}, v{b+2*j}, v{b+2*j+1}")
        for j in range(4):
            k(f"v_lshlrev_b32 v{b+2*j}, 16, v{t+j}\nv_and_b32 v{b+2*j+1}, 0xffff0000, v{t+j}")
        for j in range(4):
            k(f"v_lshlrev_b32 v{t+8+2*j}, 16, v{b+8+j}\nv_and_b32 v{t+8+2*j+1}, 0xffff0000, v{b+8+j}")
        for j in range(8): k(f"v_mul_f32 v{b+j}, v{b+j}, v{t+8+j}")
        for j in range(4): k(f"v_cvt_pk_bf16_f32 v{b+16+j}, v{b+2*j}, v{b+2*j+1}")
        k(f"buffer_store_dwordx4 v[{b+16}:{b+19}], v20, s[12:15], s{40+r} offen {SC}")
    skip = k.label("dqs")
    vm.wait(("D", 0)); proc(0); vm.issue("st")
    vm.wait(("D", 1)); proc(1); vm.issue("st")
    k(f"s_cmp_ge_u32 s3, 2\ns_cbranch_scc1 {skip}")
    vm.wait(("D", 2)); proc(2); vm.issue("st")
    k(f"{skip}:")

def x_role(k):
    vm = VM(k)
    srd(k, 8, 44, 45, S*D*2); srd(k, 12, 52, 53, D*D*2); srd(k, 16, 60, 61, XF_SZ, XF_OFF)
    NST = 3; XB = 32768; UB = 16384; STB = XB + UB
    k(f"""
    s_sub_u32 s38, s5, 27
    v_lshrrev_b32 v3, 3, v2
    v_and_b32 v4, 7, v2
    s_lshl_b32 s24, s4, 8
    s_lshl_b32 s25, s3, 6
    s_add_u32 s24, s24, s25
    s_mul_i32 s24, s24, 1280
    """)
    for t in range(8):
        k(f"""
        v_add_u32 v5, {t*8}, v3
        v_bfe_u32 v6, v5, 1, 3
        v_xor_b32 v6, v6, v4
        v_lshlrev_b32 v6, 4, v6
        v_mul_u32_u24 v5, 1280, v5
        v_add_u32 v{16+t}, v5, v6
        """)
        if t & 3: k(f"v_subrev_u32 v{16+t}, {1024*(t&3)}, v{16+t}")
    k(f"""
    v_lshrrev_b32 v3, 4, v2
    v_and_b32 v4, 15, v2
    v_lshlrev_b32 v5, 2, v3
    v_xor_b32 v5, v5, v4
    v_lshlrev_b32 v5, 4, v5
    v_mul_u32_u24 v6, 1280, v3
    v_add_u32 v24, v5, v6
    """)
    for t in range(1, 4): k(f"v_add_u32 v{24+t}, {t*4*1280 - 1024*t}, v24")
    k(f"""
    s_mul_i32 s25, s3, {16*1280}
    s_lshl_b32 s26, s38, 8
    s_add_u32 s25, s25, s26
    s_lshl_b32 s26, s3, 13
    s_lshl_b32 s27, s3, 12
    s_add_u32 s27, s27, {XB}
    """)
    def issue_list(c):
        st = (c % NST) * STB
        out = []
        for half in range(2):
            for t in range(4):
                pre = f"s_add_u32 m0, s26, {st + half*4096}\ns_nop 0\n" if t == 0 else ""
                out.append(pre + f"buffer_load_dwordx4 v{16+half*4+t}, s[8:11], s24 offen offset:{1024*t} lds")
        for t in range(4):
            pre = f"s_add_u32 m0, s27, {st}\ns_nop 0\n" if t == 0 else ""
            post = f"\ns_add_u32 s24, s24, 128\ns_add_u32 s25, s25, {64*1280}" if t == 3 else ""
            out.append(pre + f"buffer_load_dwordx4 v{24+t}, s[12:15], s25 offen offset:{1024*t} lds" + post)
        return out
    for c in range(2):
        for s in issue_list(c): k(s); vm.issue(c)
    k(f"""
    v_and_b32 v3, 31, v2
    v_lshrrev_b32 v4, 5, v2
    v_bfe_u32 v5, v3, 1, 3
    v_lshlrev_b32 v6, 7, v3
    v_add_u32 v6, s26, v6
    """)
    for ks in range(4):
        k(f"v_or_b32 v7, {2*ks}, v4\nv_xor_b32 v7, v7, v5\nv_lshl_add_u32 v{28+ks}, v7, 4, v6")
    k(f"""
    v_bfe_u32 v3, v2, 2, 2
    v_lshlrev_b32 v5, 11, v4
    v_lshl_add_u32 v5, v3, 8, v5
    v_bfe_u32 v6, v2, 4, 1
    v_lshl_add_u32 v5, v6, 5, v5
    v_and_b32 v6, 3, v2
    v_lshl_add_u32 v5, v6, 3, v5
    v_add_u32 v5, {XB}, v5
    """)
    for et in range(4):
        k(f"v_xor_b32 v7, {et}, v3\nv_lshl_add_u32 v{32+et}, v7, 6, v5")
    def reads2(ks, buf):
        b = 40 + buf*24
        for et in range(4):
            for rd in range(2):
                k(f"ds_read_b64_tr_b16 v[{b+et*4+rd*2}:{b+et*4+rd*2+1}], v{32+et} offset:{ks*4096 + rd*1024}")
        for sb in range(2):
            k(f"ds_read_b128 v[{b+16+sb*4}:{b+19+sb*4}], v{28+ks} offset:{sb*4096}")
    first = True
    for c in range(10):
        vm.wait(c)
        k("s_barrier")
        if c == 0: stamp(k, 1)
        pend = issue_list(c + 2) if c + 2 < 10 else []
        reads2(0, 0)
        n = 0
        for ks in range(4):
            buf = ks & 1
            if ks < 3:
                reads2(ks + 1, buf ^ 1)
                k("s_waitcnt lgkmcnt(10)")
            else:
                k("s_waitcnt lgkmcnt(0)")
            b = 40 + buf*24
            for et in range(4):
                for sb in range(2):
                    a = (et*2 + sb)*16
                    src = "0" if first else f"a[{a}:{a+15}]"
                    k(f"v_mfma_f32_32x32x16_bf16 a[{a}:{a+15}], v[{b+et*4}:{b+et*4+3}], v[{b+16+sb*4}:{b+19+sb*4}], {src}")
                    n += 1
                    if n % 2 == 0 and pend:
                        k(pend.pop(0)); vm.issue(c + 2)
            first = False
        assert not pend
        d = STB if (c % NST) != NST-1 else -(NST-1)*STB
        for r in range(28, 36):
            k(f"v_add_u32 v{r}, {d & 0xffffffff}, v{r}")
    stamp(k, 2)
    k(f"""
    s_nop 7
    v_lshlrev_b32 v3, 4, v2
    s_lshl_b32 s24, s4, 3
    s_lshl_b32 s25, s3, 1
    s_add_u32 s24, s24, s25
    s_mul_i32 s24, s24, 40
    s_lshl_b32 s25, s38, 3
    s_add_u32 s24, s24, s25
    s_lshl_b32 s24, s24, 10
    s_add_u32 s25, s24, {40*1024}
    s_add_u32 s28, s24, 4096
    s_add_u32 s29, s25, 4096
    """)
    n = 0
    for et in range(4):
        for sb in range(2):
            a = (et*2 + sb)*16
            for half in range(2):
                t = 40 + (n % 4)*12; n += 1
                for j in range(8): k(f"v_accvgpr_read_b32 v{t+j}, a{a+half*8+j}")
                for j in range(4): k(f"v_cvt_pk_bf16_f32 v{t+8+j}, v{t+2*j}, v{t+2*j+1}")
                k(f"s_nop 1\nv_permlane32_swap_b32 v{t+8}, v{t+10}\nv_permlane32_swap_b32 v{t+9}, v{t+11}")
                kk = et*2 + half
                so = (24 + sb) if kk < 4 else (28 + sb)
                k(f"buffer_store_dwordx4 v[{t+8}:{t+11}], v3, s[16:19], s{so} offen offset:{(kk&3)*1024} {SC}")
    stamp(k, 3)
    k("s_lshl_b32 s36, s4, 5\ns_add_u32 s36, s36, s5")
    publish(k, vm, 3)
    stamp(k, 4)

def t_role(k):
    vm = VM(k)
    NSLOT = 10; DA = 4
    k("""
    s_mul_i32 s6, s4, 27
    s_add_u32 s6, s6, s5
    s_and_b32 s7, s6, 7
    s_lshr_b32 s6, s6, 3
    s_lshl_b32 s36, s7, 5
    s_add_u32 s36, s36, s6
    """)
    dq_loads(k, vm)
    srd(k, 20, 54, 55, F*F*2)
    k(f"""
    v_lshrrev_b32 v3, 3, v2
    v_and_b32 v4, 7, v2
    v_and_b32 v5, 2, v3
    v_xor_b32 v4, v4, v5
    v_mul_u32_u24 v3, 3456, v3
    """)
    for t in range(4):
        k(f"v_xor_b32 v5, {(t&1)*4}, v4\nv_lshl_add_u32 v{16+t}, v5, 4, v3")
        if t: k(f"v_add_u32 v{16+t}, {t*8*3456 - t*1024}, v{16+t}")
    k(f"""
    s_mul_i32 s24, s3, {32*3456}
    s_lshl_b32 s25, s6, 7
    s_add_u32 s24, s24, s25
    s_mul_i32 s26, s3, {NSLOT*4096}
    s_mul_i32 s27, s7, 54
    s_add_u32 s27, s27, s3
    s_mul_i32 s27, s27, 5120
    v_lshlrev_b32 v20, 4, v2
    """)
    def issueV(i):
        k(f"s_add_u32 m0, s26, {(i % NSLOT)*4096}\ns_nop 0")
        for t in range(4):
            k(f"buffer_load_dwordx4 v{16+t}, s[20:23], s24 offen offset:{1024*t} lds"); vm.issue(("V", i))
        k(f"s_add_u32 s24, s24, {128*3456}")
    AB = 64
    def issueA(i, mt):
        r = AB + (i % DA)*20 + mt*4
        if mt == 4:
            k(f"buffer_load_dwordx4 v[{r}:{r+3}], v21, s[12:15], s27 offen {SC}")
            k(f"s_add_u32 s27, s27, {4*5120}")
        else:
            k(f"buffer_load_dwordx4 v[{r}:{r+3}], v20, s[12:15], s27 offen offset:{mt*1024} {SC}")
        vm.issue(("A", i))
    NSTEP = 14
    for i in range(NSLOT): issueV(i)
    k("v_add_u32 v21, 4096, v20")
    k(f"""
    v_lshrrev_b32 v3, 4, v2
    v_bfe_u32 v4, v2, 2, 2
    v_lshl_add_u32 v4, v3, 3, v4
    v_lshlrev_b32 v4, 7, v4
    v_and_b32 v5, 3, v2
    v_lshl_add_u32 v4, v5, 3, v4
    v_add_u32 v4, s26, v4
    v_bfe_u32 v5, v2, 3, 2
    """)
    for nt in range(4):
        k(f"v_xor_b32 v6, {nt}, v5\nv_lshl_add_u32 v{24+nt}, v6, 5, v4")
    k(f"""
    s_lshl_b32 s28, s7, 5
    v_and_b32 v28, 31, v2
    v_add_u32 v28, s28, v28
    v_cmp_gt_u32 vcc, 27, v2
    s_nop 1
    v_cndmask_b32 v29, 0, 1, vcc
    """)
    vm.wait(("D", 0))
    stamp(k, 1)
    srd(k, 12, 60, 61, WQF_SZ, WQF_OFF); srd(k, 16, 60, 61, TF_SZ, TF_OFF)
    dq_proc(k, vm)
    publish(k, vm, 1)
    stamp(k, 2)
    poll(k, "v28", "v29")
    stamp(k, 3)
    for i in range(DA):
        for mt in range(5): issueA(i, mt)
    BB = 32
    def readsB(i):
        b = BB + (i & 1)*16
        for nt in range(4):
            for rd in range(2):
                k(f"ds_read_b64_tr_b16 v[{b+nt*4+rd*2}:{b+nt*4+rd*2+1}], v{24+nt} offset:{(i % NSLOT)*4096 + rd*512}")
    last = k.label("tlast")
    readsB(0)
    for i in range(NSTEP):
        if i == NSTEP-1:
            k(f"s_cmp_ge_u32 s3, 2\ns_cbranch_scc1 {last}")
        if i + 1 < NSTEP:
            vm.wait(("V", i+1))
            readsB(i+1)
            vm.wait(("A", i))
            k("s_waitcnt lgkmcnt(8)")
        else:
            vm.wait(("A", i))
            k("s_waitcnt lgkmcnt(0)")
        if i + NSLOT < NSTEP: issueV(i + NSLOT)
        b = BB + (i & 1)*16
        for mt in range(5):
            r = AB + (i % DA)*20 + mt*4
            for nt in range(4):
                a = (mt*4 + nt)*4
                src = "0" if i == 0 else f"a[{a}:{a+3}]"
                k(f"v_mfma_f32_16x16x32_bf16 a[{a}:{a+3}], v[{r}:{r+3}], v[{b+nt*4}:{b+nt*4+3}], {src}")
            if i + DA < NSTEP: issueA(i + DA, mt)
    k(f"{last}:")
    k("s_waitcnt vmcnt(0) lgkmcnt(0)"); vm.q = []
    stamp(k, 4)
    k(f"s_nop 7\nv_add_u32 v22, s26, v20")
    for t in range(20):
        k(f"ds_write_b128 v22, a[{t*4}:{t*4+3}] offset:{t*1024}")
    k("s_waitcnt lgkmcnt(0)\ns_barrier")
    done = k.label("tdone")
    for r in range(3):
        if r == 2: k(f"s_cmp_ge_u32 s3, 2\ns_cbranch_scc1 {done}")
        k(f"""
        s_add_u32 s28, s3, {4*r}
        s_cmp_ge_u32 s28, 5
        s_cselect_b32 s29, 1, 0
        s_mul_i32 s30, s29, 5
        s_sub_u32 s28, s28, s30
        s_lshl_b32 s30, s28, 12
        s_lshl_b32 s31, s29, 11
        s_add_u32 s30, s30, s31
        v_add_u32 v23, s30, v20
        v_add_u32 v28, {2*NSLOT*4096}, v23
        s_lshl_b32 s30, s6, 1
        s_add_u32 s30, s30, s29
        s_mul_i32 s30, s30, 40
        s_mul_i32 s31, s7, 5
        s_add_u32 s30, s30, s31
        s_add_u32 s30, s30, s28
        s_lshl_b32 s30, s30, 10
        """)
        b = 64 + r*40
        for ww in range(4):
            av = "v23" if ww < 2 else "v28"
            for p in range(2):
                d = b + ww*8 + p*4
                k(f"ds_read_b128 v[{d}:{d+3}], {av} offset:{(ww&1)*NSLOT*4096 + p*1024}")
        k("s_waitcnt lgkmcnt(0)")
        for j in range(8):
            k(f"v_add_f32 v{b+j}, v{b+j}, v{b+8+j}\nv_add_f32 v{b+16+j}, v{b+16+j}, v{b+24+j}")
        for j in range(8): k(f"v_add_f32 v{b+j}, v{b+j}, v{b+16+j}")
        o = b + 32
        k(f"""
        v_cvt_pk_bf16_f32 v{o}, v{b}, v{b+1}
        v_cvt_pk_bf16_f32 v{o+1}, v{b+2}, v{b+3}
        v_cvt_pk_bf16_f32 v{o+2}, v{b+4}, v{b+5}
        v_cvt_pk_bf16_f32 v{o+3}, v{b+6}, v{b+7}
        s_nop 1
        v_permlane16_swap_b32 v{o}, v{o+2}
        v_permlane16_swap_b32 v{o+1}, v{o+3}
        buffer_store_dwordx4 v[{o}:{o+3}], v20, s[16:19], s30 offen {SC}
        """)
    k(f"{done}:")
    publish(k, vm, 3)

def y_phase(k):
    vm = VM(k)
    k("""
    s_mul_i32 s7, s5, 37
    s_lshr_b32 s7, s7, 8
    s_mul_i32 s6, s7, 7
    s_sub_u32 s6, s5, s6
    s_and_b32 s24, s4, 1
    s_mul_i32 s24, s24, 7
    s_add_u32 s6, s6, s24
    s_lshr_b32 s24, s4, 1
    s_lshl_b32 s24, s24, 2
    s_add_u32 s7, s7, s24
    """)
    srd(k, 8, 60, 61, TF_SZ, TF_OFF); srd(k, 12, 60, 61, XF_SZ, XF_OFF); srd(k, 16, 56, 57, S*F*2)
    k(f"""
    v_lshlrev_b32 v20, 4, v2
    s_lshl_b32 s24, s6, 2
    s_add_u32 s24, s24, s3
    s_mul_i32 s24, s24, 40960
    s_lshl_b32 s25, s7, 2
    s_add_u32 s25, s25, s3
    s_mul_i32 s25, s25, 40960
    s_mul_i32 s26, s3, 40960
    """)
    for gb in range(4): k(f"v_add_u32 v{24+gb}, {gb*40960}, v20")
    k(f"""
    s_lshr_b32 s28, s7, 1
    s_lshl_b32 s28, s28, 5
    s_add_u32 s28, s28, 27
    v_min_u32 v28, 4, v2
    v_add_u32 v28, s28, v28
    v_mov_b32 v29, 2
    """)
    poll(k, "v28", "v29")
    stamp(k, 5)
    XB = 64
    for c in range(10):
        for t in range(4):
            r = XB + (c*4 + t)*4
            k(f"buffer_load_dwordx4 v[{r}:{r+3}], v20, s[12:15], s25 offen offset:{1024*t} {SC}"); vm.issue("x")
        k("s_add_u32 s25, s25, 4096")
    k(f"""
    v_bfe_u32 v28, v2, 1, 3
    v_lshlrev_b32 v28, 5, v28
    v_and_b32 v30, 1, v2
    s_lshl_b32 s28, s6, 1
    v_add_u32 v30, s28, v30
    v_min_u32 v30, 26, v30
    v_add_u32 v28, v28, v30
    """)
    poll(k, "v28", "v29")
    stamp(k, 6)
    def issue_list(c):
        out = []
        for t in range(4):
            pre = f"s_add_u32 m0, s26, {c*4096}\ns_nop 0\n" if t == 0 else ""
            post = "\ns_add_u32 s24, s24, 4096" if t == 3 else ""
            out.append(pre + f"buffer_load_dwordx4 v20, s[8:11], s24 offen offset:{1024*t} {SC} lds" + post)
        return out
    PF = 5
    for c in range(PF):
        for s in issue_list(c): k(s); vm.issue(c)
    def readsA(kk):
        b = 32 + (kk & 1)*16
        for gb in range(4):
            k(f"ds_read_b128 v[{b+gb*4}:{b+gb*4+3}], v{24+gb} offset:{kk*1024}")
    vm.wait(0); k("s_barrier"); readsA(0)
    for c in range(10):
        pend = issue_list(c + PF) if c + PF < 10 else []
        for t in range(4):
            kk = c*4 + t
            if t == 3 and c < 9:
                vm.wait(c + 1); k("s_barrier")
            if kk < 39:
                readsA(kk + 1); k("s_waitcnt lgkmcnt(4)")
            else:
                k("s_waitcnt lgkmcnt(0)")
            b = 32 + (kk & 1)*16
            r = XB + kk*4
            for gb in range(4):
                a = gb*16
                src = "0" if kk == 0 else f"a[{a}:{a+15}]"
                k(f"v_mfma_f32_32x32x16_bf16 a[{a}:{a+15}], v[{b+gb*4}:{b+gb*4+3}], v[{r}:{r+3}], {src}")
                if gb == 1 and pend and t < 3 or (gb == 3 and pend and t == 0):
                    k(pend.pop(0)); vm.issue(c + PF)
        assert not pend
    k(f"""
    s_nop 7
    s_nop 7
    v_and_b32 v3, 31, v2
    v_lshrrev_b32 v4, 5, v2
    v_mul_u32_u24 v3, 3456, v3
    v_lshl_add_u32 v3, v4, 4, v3
    s_lshl_b32 s24, s7, 2
    s_add_u32 s24, s24, s3
    s_mul_i32 s24, s24, {32*3456}
    s_lshl_b32 s25, s6, 8
    s_add_u32 s24, s24, s25
    """)
    fin = k.label("yfin")
    n = 0
    for gb in range(4):
        if gb == 2: k(f"s_cmp_eq_u32 s6, 13\ns_cbranch_scc1 {fin}")
        a = gb*16
        for half in range(2):
            t = 64 + (n % 4)*12; n += 1
            for j in range(8): k(f"v_accvgpr_read_b32 v{t+j}, a{a+half*8+j}")
            for j in range(4): k(f"v_cvt_pk_bf16_f32 v{t+8+j}, v{t+2*j}, v{t+2*j+1}")
            k(f"s_nop 1\nv_permlane32_swap_b32 v{t+8}, v{t+10}\nv_permlane32_swap_b32 v{t+9}, v{t+11}")
            k(f"buffer_store_dwordx4 v[{t+8}:{t+11}], v3, s[16:19], s24 offen offset:{gb*64 + half*32}")
    k(f"{fin}:")

def main():
    k = Kern(NAME)
    k(f"""
    s_cmp_ge_u32 s2, 256
    s_cbranch_scc1 {k.name}_done
    s_load_dwordx16 s[44:59], s[0:1], 0
    s_load_dwordx2 s[60:61], s[0:1], 64
    """)
    stamp(k, 0)
    k(f"""
    v_lshrrev_b32 v1, 6, v0
    v_and_b32 v2, 63, v0
    v_readfirstlane_b32 s3, v1
    s_and_b32 s4, s2, 7
    s_lshr_b32 s5, s2, 3
    s_waitcnt lgkmcnt(0)
    """)
    srd(k, 32, 58, 59, 256)
    k(f"s_cmp_ge_u32 s5, 27\ns_cbranch_scc1 L_xrole")
    t_role(k)
    k("s_branch L_y")
    k("L_xrole:")
    x_role(k)
    k(f"s_cmp_ge_u32 s5, 28\ns_cbranch_scc1 L_end")
    k("L_y:")
    y_phase(k)
    k("L_end:")
    if STAMPS:
        k(f"""
        s_waitcnt vmcnt(0)
        s_memrealtime s[78:79]
        s_waitcnt lgkmcnt(0)
        s_cmp_lg_u32 s3, 0
        s_cbranch_scc1 {k.name}_done
        """)
        srd(k, 8, 60, 61, 268435456)
        k(f"s_lshl_b32 s5, s2, 6\ns_add_u32 s5, s5, {STAMP_OFF}")
        for i in range(16): k(f"v_mov_b32 v{4+i}, s{64+i}")
        k("v_mov_b32 v3, 0\ns_mov_b64 exec, 1")
        for i in range(4): k(f"buffer_store_dwordx4 v[{4+4*i}:{7+4*i}], v3, s[8:11], s5 offen offset:{16*i}")
    k(f"{k.name}_done:\ns_endpgm")
    out = sys.argv[1]
    s = open("hdr.txt").read() + f"; @launch grid=(256,1,1) block=(256,1,1) lds=163840\n" + HDR + k.text() + '.section .rodata,"a"\n.p2align 6\n' + k.desc(224+128, 96, 224)
    open(out, "w").write(s)
main()
```
